```python
import torch

def _softmax(x, axis=-1):
    return torch.softmax(x, dim=axis)
def _gelu(x):
    return torch.nn.functional.gelu(x, approximate="tanh")
def _silu(x):
    return torch.nn.functional.silu(x)
def _sigmoid(x):
    return torch.sigmoid(x)
def _layernorm(x, axis=-1, eps=1e-5):
    m = x.mean(dim=axis, keepdim=True)
    v = x.var(dim=axis, keepdim=True, unbiased=False)
    return (x - m) / torch.sqrt(v + eps)
def _scatter_add(tgt, idx, src, axis=0):
    return tgt.clone().index_add_(axis, idx, src)
def _segment_sum(src, seg, n):
    out = torch.zeros((n,) + src.shape[1:], dtype=src.dtype)
    return out.index_add_(0, seg, src)
def _pad(x, pw):
    flat = tuple(v for pair in reversed(pw) for v in pair)
    return torch.nn.functional.pad(x, flat)

kernel_name = 'interleave_layers__spectral_gfnet__glu_gated_reglu__prompt'

def setup_inputs():

    _w = (lambda a: (lambda t: t.to(torch.bfloat16) if t.is_floating_point() else t)(torch.as_tensor(a)))
    def _A_setup():
        B, S, D = 1, 2048, 512
        Df = D // 2 + 1
        return {
            "x": _w((lambda *s: torch.randn(*s, dtype=torch.bfloat16) * 0.05)(B, S, D)),
            "w_r": _w((lambda *s: torch.randn(*s, dtype=torch.bfloat16) * 0.4)(S, Df) * 0.02),
            "w_i": _w((lambda *s: torch.randn(*s, dtype=torch.bfloat16) * 0.4)(S, Df) * 0.02),
        }
    _A_in = _A_setup()

    def _B_setup():
        B, S, D, F = 1, 2048, 512, 1376
        return {
            "x": _w((lambda *s: torch.randn(*s, dtype=torch.bfloat16) * 0.05)(B, S, D)),
            "W_gate": _w((lambda *s: torch.randn(*s, dtype=torch.bfloat16) * 0.2)(D, F) * (2.0 / D) ** 0.5),
            "W_up": _w((lambda *s: torch.randn(*s, dtype=torch.bfloat16) * 0.2)(D, F) * (2.0 / D) ** 0.5),
            "W_down": _w((lambda *s: torch.randn(*s, dtype=torch.bfloat16) * 0.2)(F, D) * (1.0 / F) ** 0.5),
        }
    _B_in = _B_setup()

    return {
        "A_x": _A_in["x"],
        "A_w_r": _A_in["w_r"],
        "A_w_i": _A_in["w_i"],
        "B_x": _B_in["x"],
        "B_W_gate": _B_in["W_gate"],
        "B_W_up": _B_in["W_up"],
        "B_W_down": _B_in["W_down"],
    }

def reference(A_x, A_w_r, A_w_i, B_x, B_W_gate, B_W_up, B_W_down):
    def _A_ref(x, w_r, w_i):
        B, S, D = x.shape
        X = (lambda x, axes=(-2,-1): torch.fft.rfft2(x.float(), dim=axes))(x, axes=(-2, -1))
        W = w_r + 1j * w_i
        X = X * W
        y = (lambda x, s, axes=(-2,-1): torch.fft.irfft2(x, s=s, dim=axes).to(torch.bfloat16))(X, (S, D), axes=(-2, -1))
        return y

    def _B_ref(x, W_gate, W_up, W_down):
        gate = torch.einsum("bsd,df->bsf", x, W_gate)
        up = torch.einsum("bsd,df->bsf", x, W_up)
        gate = gate * (lambda x, dt: x.to(dt))(gate > 0, gate.dtype)
        h = gate * up
        return torch.einsum("bsf,fd->bsd", h, W_down)

    x = A_x
    x = x + _A_ref(_layernorm(x, axis=-1), A_w_r, A_w_i)
    x = x + _B_ref(_layernorm(x, axis=-1), B_W_gate, B_W_up, B_W_down)
    x = x + _A_ref(_layernorm(x, axis=-1), A_w_r, A_w_i)
    x = x + _B_ref(_layernorm(x, axis=-1), B_W_gate, B_W_up, B_W_down)
    return x
```

```python
import re

def _regs(tok):
    tok = tok.strip()
    tok = tok.lstrip('-')
    m = re.match(r'^abs\((.*)\)$', tok)
    if m: tok = m.group(1)
    m = re.match(r'^\|(.*)\|$', tok)
    if m: tok = m.group(1)
    m = re.match(r'^([vas])\[(\d+):(\d+)\]$', tok)
    if m: return [f"{m.group(1)}{i}" for i in range(int(m.group(2)), int(m.group(3))+1)]
    m = re.match(r'^([vas])(\d+)$', tok)
    if m: return [tok]
    if tok in ('vcc', 'exec', 'm0', 'scc'): return [tok]
    if tok in ('vcc_lo', 'vcc_hi'): return ['vcc']
    if tok in ('exec_lo', 'exec_hi'): return ['exec']
    return []

TRANS = ('v_exp_f32','v_log_f32','v_rcp_f32','v_rsq_f32','v_sqrt_f32','v_sin_f32','v_cos_f32','v_rcp_iflag_f32')

class Ins:
    __slots__ = ('text','op','cls','wr','rd','passes','srcc','dpp','wide_store_data','ws','ab')
    def __init__(self, text):
        self.text = text
        t = text.split(';')[0].strip()
        parts = t.split(None, 1)
        op = parts[0]; self.op = op
        rest = parts[1] if len(parts) > 1 else ''
        ops = []; depth = 0; cur = ''
        for ch in rest:
            if ch in '[(': depth += 1
            if ch in '])': depth -= 1
            if ch == ',' and depth == 0: ops.append(cur.strip()); cur = ''
            else: cur += ch
        if cur.strip(): ops.append(cur.strip())
        mods = ''
        if ops:
            last = ops[-1].split(None, 1)
            ops[-1] = last[0]
            mods = last[1] if len(last) > 1 else ''
        self.wr = []; self.rd = []; self.passes = 0; self.srcc = []; self.dpp = False
        self.wide_store_data = []; self.ws = 1; self.ab = []
        R = [_regs(o) for o in ops]
        base = op.replace('_e32','').replace('_e64','').replace('_dpp','').replace('_sdwa','')
        if op == 's_nop':
            self.cls = 'nop'; self.ws = int(ops[0], 0) + 1
        elif op.startswith('v_mfma'):
            self.cls = 'mfma'
            self.passes = 8 if '32x32x16' in op else 4 if '16x16x32' in op else None
            assert self.passes, op
            self.wr = R[0]; self.ab = R[1] + R[2]; self.srcc = R[3]; self.rd = R[1] + R[2] + R[3]
        elif op.startswith('v_'):
            self.cls = 'trans' if base in TRANS else 'valu'
            self.dpp = op.endswith('_dpp')
            if base.startswith('v_cmp'):
                self.wr = R[0]; self.rd = sum(R[1:], [])
            elif base in ('v_readfirstlane_b32','v_readlane_b32'):
                self.wr = R[0]; self.rd = sum(R[1:], []); self.cls = 'readlane'
            elif base.startswith('v_permlane'):
                self.wr = R[0] + R[1]; self.rd = R[0] + R[1]; self.cls = 'permlane'
            elif base in ('v_add_co_u32','v_addc_co_u32','v_sub_co_u32','v_subb_co_u32'):
                self.wr = R[0] + R[1]; self.rd = sum(R[2:], [])
            else:
                self.wr = R[0]; self.rd = sum(R[1:], [])
                if base in ('v_fmac_f32','v_dot2c_f32_bf16','v_writelane_b32') or self.dpp or 'UNUSED_PRESERVE' in mods:
                    self.rd = self.rd + R[0]
                if base == 'v_cndmask_b32' and len(ops) == 3: self.rd.append('vcc')
        elif op.startswith('buffer_') or op.startswith('global_'):
            self.cls = 'vmem'
            lds = re.search(r'\blds\b', mods) is not None
            if op in ('buffer_inv','buffer_wbl2'):
                pass
            elif 'load' in op:
                if lds:
                    self.rd = sum(R, []) + ['m0']; self.cls = 'dma'
                else:
                    self.wr = R[0]; self.rd = sum(R[1:], [])
                    if 'd16' in op: self.rd = self.rd + R[0]
            elif 'store' in op:
                self.rd = sum(R, [])
                data = R[0] if op.startswith('buffer_') else R[1]
                if len(data) >= 3: self.wide_store_data = data
            elif 'atomic' in op:
                self.rd = sum(R, [])
                if 'sc0' in mods: self.wr = R[0]
            else: raise ValueError(text)
        elif op.startswith('ds_'):
            self.cls = 'ds'
            if 'read' in op or 'bpermute' in op or 'swizzle' in op or 'permute' in op:
                self.wr = R[0]; self.rd = sum(R[1:], [])
            else:
                self.rd = sum(R, [])
        elif op.startswith('s_'):
            self.cls = 'salu'
            if op.startswith('s_cmp') or op.startswith('s_cbranch') or op in ('s_branch','s_barrier','s_waitcnt','s_endpgm','s_sleep','s_setprio'):
                self.rd = sum(R, [])
            else:
                self.wr = R[0] if R else []; self.rd = sum(R[1:], [])
                if 'saveexec' in op: self.wr = self.wr + ['exec']
        else:
            raise ValueError("unknown instr: " + text)

VALU_LIKE = ('valu','trans','readlane','permlane')

def need(prev, cur):
    n = 0
    pw = set(prev.wr)
    if prev.cls in VALU_LIKE:
        vw = {r for r in pw if r[0] in 'va' and r not in ('vcc',)}
        sw = {r for r in pw if r[0] == 's' or r == 'vcc'}
        if cur.cls == 'mfma' and vw & set(cur.rd): n = max(n, 2)
        if cur.dpp and vw & set(cur.rd): n = max(n, 2)
        if cur.cls == 'permlane' and vw & set(cur.rd): n = max(n, 2)
        if cur.cls == 'readlane' and vw & set(cur.rd): n = max(n, 1)
        if prev.cls == 'trans' and cur.cls in VALU_LIKE and vw & set(cur.rd): n = max(n, 1)
        if sw:
            if cur.cls in VALU_LIKE and sw & set(cur.rd): n = max(n, 4 if cur.cls == 'readlane' else 2)
            if cur.cls in ('vmem','dma') and sw & set(cur.rd): n = max(n, 5)
            if cur.cls == 'salu' and sw & set(cur.rd): n = max(n, 1)
        if 'sdwa' in prev.op and cur.cls in VALU_LIKE and vw & set(cur.rd + cur.wr): n = max(n, 1)
    if prev.cls == 'mfma':
        p4 = prev.passes == 4
        if cur.cls == 'mfma':
            if pw & set(cur.srcc):
                if list(prev.wr) == list(cur.srcc) and prev.passes == cur.passes: pass
                else: n = max(n, 6 if p4 else 10)
            if pw & set(cur.ab): n = max(n, 8 if p4 else 12)
            if (pw & set(cur.wr)) and not (pw & set(cur.srcc)): n = max(n, 8 if p4 else 12)
        elif cur.cls in VALU_LIKE or cur.cls in ('vmem','dma','ds'):
            if pw & (set(cur.rd) | set(cur.wr)): n = max(n, 8 if p4 else 12)
            if cur.cls in VALU_LIKE and set(prev.srcc) & set(cur.wr): n = max(n, 3 if p4 else 7)
    if prev.cls == 'salu' and 'm0' in pw and cur.cls == 'dma': n = max(n, 1)
    if prev.wide_store_data and set(prev.wide_store_data) & set(cur.wr):
        n = max(n, 2 if cur.cls in VALU_LIKE else 1)
    return n

class Asm:
    def __init__(self):
        self.lines = []
        self.hist = []
        self.nops = 0
    def raw(self, s):
        self.lines.append(s)
    def label(self, name):
        self.lines.append(name + ':')
    def flush(self):
        self.hist = []
    def __call__(self, text):
        for t in text.split('\n'):
            t = t.strip()
            if not t or t.startswith(';'): continue
            ins = Ins(t)
            dist = 0; req = 0
            for prev in reversed(self.hist):
                r = need(prev, ins) - dist
                if r > req: req = r
                dist += prev.ws
                if dist >= 20: break
            while req > 0:
                k = min(req, 16)
                nop = Ins(f"s_nop {k-1}")
                self.lines.append(f"  s_nop {k-1}")
                self.hist.append(nop); self.nops += k
                req -= k
            self.lines.append("  " + t)
            self.hist.append(ins)
            if len(self.hist) > 40: self.hist = self.hist[-40:]
    def text(self):
        return "\n".join(self.lines) + "\n"

def kernel_header(A, name):
    A.raw(f".globl {name}")
    A.raw(".p2align 8")
    A.raw(f".type {name},@function")
    A.raw(f"{name}:")
    A.flush()

def descriptor(name, vgpr, sgpr=96, accum=None):
    if accum is None: accum = (vgpr + 3)//4*4
    return f""".p2align 6
.amdhsa_kernel {name}
  .amdhsa_next_free_vgpr {vgpr}
  .amdhsa_next_free_sgpr {sgpr}
  .amdhsa_accum_offset {accum}
  .amdhsa_group_segment_fixed_size 0
  .amdhsa_kernarg_size 80
  .amdhsa_user_sgpr_count 2
  .amdhsa_user_sgpr_kernarg_segment_ptr 1
  .amdhsa_system_sgpr_workgroup_id_x 1
  .amdhsa_float_denorm_mode_32 3
.end_amdhsa_kernel
"""
def vr(b, n=1, t='v'):
    return f"{t}{b}" if n == 1 else f"{t}[{b}:{b+n-1}]"
```

```python
import numpy as np
MB = 1 << 20
S, D, F = 2048, 512, 1376
NCH = F // 8
NK2 = F // 32
XT0, XT1, XT2, XT3, DT3 = 0*MB, 2*MB, 4*MB, 6*MB, 8*MB
H1, H2 = 10*MB, 16*MB
WGU = 22*MB
QF = WGU + NCH*16384
WDP = 26*MB
WDT = 28*MB
WT = 30*MB
SSQ1 = 32*MB
SSQ3 = SSQ1 + 8192
RR2 = SSQ1 + 16384
RR4 = SSQ1 + 24576
SYNC = 33*MB
STAMP = 34*MB
WS_USED = 40*MB
EPS = 1e-5

def bf2f(u): return (np.asarray(u).astype(np.uint32) << 16).view(np.float32)
def f2bf(x):
    x = np.ascontiguousarray(x, dtype=np.float32)
    u = x.view(np.uint32)
    return ((u + 0x7FFF + ((u >> 16) & 1)) >> 16).astype(np.uint16)
def rb(x): return bf2f(f2bf(x))

def s_of_p(p): return (p // 64) + 32 * (p % 64)
def k_of_j(j):
    l, r = j // 4, j % 4
    n, g = l % 16, l // 16
    ka = 4*g + r
    if n == 0:
        if ka == 0: return 256
        if ka < 8: return 32*ka
        return 16 + 32*(ka-8)
    k = n + 32*ka
    return k if ka < 8 else 512 - k
def t_index():
    c = np.arange(512)[:, None]; p = np.arange(2048)[None, :]
    pb = p >> 7; t = (p >> 4) & 7; q = c >> 3; e = (c & 7) ^ ((q & 1) << 2)
    return (((pb*64 + q)*8 + t)*256 + e*32 + (p & 15)*2) // 2
def Qexact():
    Q = np.zeros((512, 512)); d = np.arange(512)
    for j in range(256):
        k = k_of_j(j)
        if j == 0:
            Q[:, 0] = (-1.0)**d / np.sqrt(512); Q[:, 1] = 1/np.sqrt(512)
        else:
            Q[:, 2*j] = np.cos(2*np.pi*k*d/512)/16; Q[:, 2*j+1] = -np.sin(2*np.pi*k*d/512)/16
    return Q

def pack_bf(vals):
    u = f2bf(vals).astype(np.uint32)
    return u[:, 0::2] | (u[:, 1::2] << 16)
lane = np.arange(64); LN = lane % 16; LG = lane // 16
E8 = np.arange(8)
PERM = 16*(E8[None, :]//4) + 4*LG[:, None] + E8[None, :] % 4

A16, A32, A64 = 1.13288, 1.624505, 1.869545
def p1_table():
    T = []
    s1 = A32/8; s2 = A16/4; st = 1/(16*s1*s2)
    db = PERM; n = LN[:, None]
    T.append(pack_bf(s1*np.cos(2*np.pi*db*n/32)))
    im = -s1*np.sin(2*np.pi*db*n/32); im[LN == 0] = (s1*(-1.0)**db)[LN == 0]
    T.append(pack_bf(im))
    da = 4*LG[:, None] + np.arange(4)[None, :]
    T.append((st*np.cos(2*np.pi*da*n/512)).astype(np.float32).view(np.uint32))
    T.append((-st*np.sin(2*np.pi*da*n/512)).astype(np.float32).view(np.uint32))
    ka = LN[:, None]
    da8 = 4*LG[:, None] + E8[None, :] % 4
    isim = (E8[None, :] >= 4)
    cr = s2*np.cos(2*np.pi*da8*ka/16); ci = -s2*np.sin(2*np.pi*da8*ka/16)
    Anre = np.where(isim, -ci, cr); Anim = np.where(isim, cr, ci) * np.where(ka >= 8, -1.0, 1.0)
    Anre = rb(Anre).astype(np.float64); Anim = rb(Anim).astype(np.float64)
    Asre = np.zeros((64, 8)); Asim = np.zeros((64, 8))
    for l in range(64):
        m = l % 16
        for e in range(8):
            a = da8[l, e]
            if m == 0:
                if e < 4: Asre[l, e] = s2*(-1.0)**a/np.sqrt(2); Asim[l, e] = s2/np.sqrt(2)
            elif m < 8:
                if e < 4: Asre[l, e] = Anre[l, e]; Asim[l, e] = Anim[l, e]
            else:
                if e >= 4:
                    w = s2*np.exp(-2j*np.pi*a*(16+32*(m-8))/512)
                    Asre[l, e] = w.real; Asim[l, e] = w.imag
    T.append(pack_bf(Anre)); T.append(pack_bf(Anim))
    T.append(pack_bf(Asre - Anre)); T.append(pack_bf(Asim - Anim))
    jk = np.zeros(256, np.uint32)
    for j in range(256): jk[k_of_j(j) - 1] = j
    return np.concatenate([np.stack(T).reshape(-1), jk]).astype(np.uint32)

def f16pair(c, s):
    return c.astype(np.float16).view(np.uint16).astype(np.uint32) | (s.astype(np.float16).view(np.uint16).astype(np.uint32) << 16)
def col_table():
    T = []
    r4 = np.arange(4)[None, :]
    ts = np.sqrt(8)/(A64*A32)
    for w in range(4):
        k1 = 16*w + LN[:, None]
        Fs = [np.exp(-2j*np.pi*((32*ks + 8*LG[:, None] + E8[None, :])*k1 % 64)/64)*(A64/16) for ks in range(2)]
        T += [pack_bf(Fs[0].real), pack_bf(Fs[1].real), pack_bf(Fs[0].imag), pack_bf(Fs[1].imag)]
        for mt in range(2):
            z = ts*np.exp(-2j*np.pi*((16*mt + 4*LG[:, None] + r4)*k1)/2048)
            T.append(f16pair(z.real, z.imag))
        for nt in range(2):
            z = ts*np.exp(2j*np.pi*((16*nt + LN[:, None])*(16*w + 4*LG[:, None] + r4))/2048)
            T.append(f16pair(z.real, z.imag))
    Fs = [np.exp(-2j*np.pi*((16*t + LN[:, None])*PERM % 32)/32)*(A32/8) for t in range(2)]
    T += [pack_bf(Fs[0].real), pack_bf(Fs[1].real), pack_bf(Fs[0].imag), pack_bf(Fs[1].imag)]
    return np.stack(T).reshape(-1).astype(np.uint32)
```

```python
import sys
sys.path.insert(0, "work")
from asmlib import *
from layout import *

KN = "interleave_layers__spectral_gfnet__glu_gated_reglu__prompt_kernel"
MF = "v_mfma_f32_16x16x32_bf16"
OPT = dict(stamps=False, pbx=4, w1a=6, w1b=3, dma0=6, w2late=8, sleep=2)
SC = "sc1"
TBL_COL = 8192
TBL_BYTES = 8192 + 36864
OOB = 0x7ff00000
F32H = lambda x: f"0x{np.float32(x).view(np.uint32):x}"

class VM:
    def __init__(self, A): self.A = A; self.ops = []; self.done = 0
    def issue(self, text, tag=None):
        if len(self.ops) - self.done >= 62:
            self.A("s_waitcnt vmcnt(56)"); self.done = len(self.ops) - 56
        self.A(text); self.ops.append(tag)
    def need(self, tags):
        idx = [i for i, t in enumerate(self.ops) if t in tags]
        assert idx, tags
        last = max(idx)
        if last < self.done: return None
        self.done = last + 1
        return len(self.ops) - 1 - last
    def wait(self, tags, extra=""):
        n = self.need(tags)
        if n is not None: self.A(f"s_waitcnt vmcnt({n}) {extra}".strip())
        elif extra: self.A(f"s_waitcnt {extra}")
    def reset(self): self.ops = []; self.done = 0

def srd(A, d, lo, hi, nbytes):
    A(f"s_mov_b32 s{d}, s{lo}"); A(f"s_mov_b32 s{d+1}, s{hi}")
    A(f"s_mov_b32 s{d+2}, {nbytes}"); A(f"s_mov_b32 s{d+3}, 0x20000")
def pc_srd(A, d, sym, nbytes):
    A(f"s_getpc_b64 s[{d}:{d+1}]")
    A.raw(f"  s_add_u32 s{d}, s{d}, {sym}@rel32@lo+4")
    A.raw(f"  s_addc_u32 s{d+1}, s{d+1}, {sym}@rel32@hi+12")
    A.raw(f"  s_mov_b32 s{d+2}, {nbytes}"); A(f"s_mov_b32 s{d+3}, 0x20000")
def interleave(A, valu, mfma, every=4, lead=0):
    mi = 0
    for i, v in enumerate(valu):
        if i >= lead and (i - lead) % every == 0 and mi < len(mfma):
            A(mfma[mi]); mi += 1
        A(v)
    for m in mfma[mi:]: A(m)

STAMPS = []
SREG = list(range(60, 88)) + [96, 97, 100, 101]
def stamp(A, name):
    if name not in STAMPS: STAMPS.append(name)
    i = STAMPS.index(name)
    assert i < 32
    if OPT['stamps']:
        A("s_memrealtime s[98:99]"); A("s_waitcnt lgkmcnt(0)"); A(f"s_mov_b32 s{SREG[i]}, s98")

uid = [0]
def lab(p):
    uid[0] += 1
    return f"{p}_{uid[0]}"

def spin(A, load, target):
    lp, dn = lab("Lpoll"), lab("Ldone")
    A("s_mov_b32 s7, 0x100000")
    A.label(lp)
    A(load); A("s_waitcnt vmcnt(0)")
    A(f"v_cmp_gt_u32 vcc, {target}, v4")
    A("s_sub_u32 s7, s7, 1")
    A(f"s_cbranch_scc1 {dn}")
    A("s_nop 2")
    A(f"s_cbranch_vccz {dn}")
    A(f"s_sleep {OPT['sleep']}")
    A(f"s_branch {lp}")
    A.label(dn)

def arrive(A, b, first=False):
    sk = lab("Larr")
    if first:
        A("v_mov_b32 v5, 0")
        A(f"buffer_load_dword v4, v5, s[24:27], 0 offen {SC}")
    A("s_waitcnt vmcnt(0) lgkmcnt(0)"); A("s_barrier")
    A("s_cmp_lg_u32 s3, 0"); A(f"s_cbranch_scc1 {sk}")
    if first:
        ok = lab("Lok")
        A("v_readfirstlane_b32 s4, v4"); A("s_cmp_lg_u32 s4, 0"); A(f"s_cbranch_scc1 {ok}")
        spin(A, f"buffer_load_dword v4, v5, s[24:27], 0 offen {SC}", 1)
        A.label(ok)
    A("v_mov_b32 v4, 1")
    if isinstance(b, int):
        A("s_mov_b64 exec, 0xff")
        A("v_lshlrev_b32 v5, 11, v0")
        A("s_and_b32 s4, s2, 15"); A("s_lshl_b32 s4, s4, 7"); A(f"s_add_u32 s4, s4, {SYNC + b*16384}")
    else:
        A("s_mov_b64 exec, 1")
        A("v_mov_b32 v5, 0")
        A("s_lshl_b32 s4, s53, 7"); A(f"s_add_u32 s4, s4, {SYNC + 65536 + int(b[1])*2048}")
    A(f"buffer_atomic_add v4, v5, s[8:11], s4 offen {SC}")
    A("s_mov_b64 exec, -1")
    A.label(sk)

def wait(A, b):
    sk = lab("Lwait")
    A("s_cmp_lg_u32 s3, 0"); A(f"s_cbranch_scc1 {sk}")
    if isinstance(b, int):
        A("s_mov_b64 exec, 0xffff")
        A("v_lshlrev_b32 v5, 7, v0")
        A("s_and_b32 s4, s2, 7"); A("s_lshl_b32 s4, s4, 11"); A(f"s_add_u32 s4, s4, {SYNC + b*16384}")
    else:
        A("s_mov_b64 exec, 1")
        A("v_mov_b32 v5, 0")
        A("s_lshl_b32 s4, s53, 7"); A(f"s_add_u32 s4, s4, {SYNC + 65536 + int(b[1])*2048}")
    spin(A, f"buffer_load_dword v4, v5, s[8:11], s4 offen {SC}", 16)
    A("s_mov_b64 exec, -1")
    A.label(sk)
    A("s_waitcnt lgkmcnt(0)")
    A("s_barrier")

RX, RG, RW, RD, RQ, RE = 0, 64, 152, 184, 227, 243
def gen_entry_p1(A):
    kernel_header(A, KN)
    A.label("Lstart")
    if OPT['stamps']: A("s_memrealtime s[60:61]")
    STAMPS.append("start")
    A("s_load_dwordx16 s[32:47], s[0:1], 0")
    A("s_load_dwordx4 s[48:51], s[0:1], 64")
    A("s_cmp_lt_u32 s2, 256"); A("s_cbranch_scc1 Lgo"); A("s_endpgm"); A.label("Lgo")
    pc_srd(A, 12, "tbl", TBL_BYTES)
    pc_srd(A, 16, "Lstart", "Lcode_end-Lstart")
    A("v_lshrrev_b32 v1, 6, v0"); A("v_and_b32 v0, 63, v0"); A("v_readfirstlane_b32 s3, v1")
    A("v_lshlrev_b32 v1, 4, v0"); A("v_and_b32 v2, 15, v0"); A("v_lshrrev_b32 v3, 4, v0")
    AR, DR, CR, OR_ = 16, 48, 112, 160
    A("s_movk_i32 s4, 4096")
    for i in range(8):
        A(f"buffer_load_dwordx4 v[{CR+4*i}:{CR+4*i+3}], v1, s[12:15], {'0' if i < 4 else 's4'} offen offset:{(i%4)*1024}")
    A("s_lshr_b32 s5, s2, 3"); A("s_lshl_b32 s5, s5, 2"); A("s_add_u32 s5, s5, s3"); A("s_lshl_b32 s5, s5, 10")
    A("v_add_u32 v4, s5, v1")
    A("buffer_load_dwordx4 v[248:251], v4, s[16:19], 0 offen")
    A("buffer_load_dwordx4 v[252:255], v4, s[12:15], 0 offen")
    pbx = OPT['pbx']; nx = pbx//2; lg = lambda x: x.bit_length()-1
    A("s_and_b32 s4, s2, 7"); A("s_lshr_b32 s5, s2, 3")
    A("s_lshl_b32 s52, s4, 5"); A("s_add_u32 s52, s52, s5")
    A(f"s_lshr_b32 s53, s4, {lg(nx)}"); A(f"s_lshl_b32 s53, s53, {lg(pbx)}"); A(f"s_and_b32 s6, s5, {pbx-1}"); A("s_add_u32 s53, s53, s6")
    A(f"s_and_b32 s54, s4, {nx-1}"); A(f"s_lshl_b32 s54, s54, {lg(32//pbx)}"); A(f"s_lshr_b32 s6, s5, {lg(pbx)}"); A("s_add_u32 s54, s54, s6")
    A("s_lshr_b32 s6, s54, 3"); A("s_lshl_b32 s55, s53, 1"); A("s_add_u32 s55, s55, s6")
    A("s_and_b32 s56, s54, 7")
    A("s_mul_i32 s57, s54, 12"); A("s_mul_i32 s6, s3, 3"); A("s_add_u32 s57, s57, s6")
    A("s_mov_b32 s58, 0x05040100"); A("s_mov_b32 s59, 0x07060302")
    A("v_lshlrev_b32 v6, 10, v3"); A("v_lshl_add_u32 v6, v2, 4, v6")
    A("s_cmp_eq_u32 s3, 3"); A(f"s_cselect_b32 s4, {OOB}, 0"); A("v_add_u32 v7, s4, v6")
    A("v_and_b32 v12, 1, v2"); A("v_lshlrev_b32 v12, 7, v12"); A("v_lshl_add_u32 v12, v3, 8, v12"); A("v_lshrrev_b32 v4, 1, v2"); A("v_lshl_add_u32 v12, v4, 4, v12")
    OUT = 32768
    A(f"s_mul_i32 s30, s3, 9216"); A(f"s_add_u32 s30, s30, {OUT}")
    A("v_mul_u32_u24 v13, 144, v0"); A("v_add_u32 v13, s30, v13")
    A("v_lshrrev_b32 v4, 3, v0"); A("v_mul_u32_u24 v14, 144, v4"); A("v_and_b32 v5, 7, v0"); A("v_lshl_add_u32 v14, v5, 4, v14"); A("v_add_u32 v14, s30, v14")
    A("s_lshl_b32 s31, s2, 2"); A("s_add_u32 s31, s31, s3")
    A("s_mov_b32 s29, 3")
    A("s_waitcnt lgkmcnt(0)")
    srd(A, 8, 50, 51, WS_USED)
    srd(A, 24, 48, 49, 256)
    A(f"s_cmp_ge_u32 s2, {RE}"); A("s_cbranch_scc1 P1_SPARE")
    A(f"s_cmp_ge_u32 s2, {RQ}"); A("s_cbranch_scc1 P1_Q")
    A(f"s_cmp_ge_u32 s2, {RD}"); A("s_cbranch_scc1 P1_D")
    A(f"s_cmp_ge_u32 s2, {RW}"); A("s_cbranch_scc1 P1_W")
    A(f"s_cmp_ge_u32 s2, {RG}"); A("s_cbranch_scc1 P1_G")
    srd(A, 16, 32, 33, 2*MB)
    A("s_lshr_b32 s5, s31, 3"); A("s_and_b32 s6, s31, 7"); A("s_lshl_b32 s6, s6, 8"); A("s_add_u32 s5, s5, s6")
    A("s_lshl_b32 s5, s5, 10"); A("s_mov_b32 s6, 32768"); A("s_mov_b32 s29, 0")
    A("s_branch P1_XD")
    A.label("P1_D")
    srd(A, 16, 44, 45, F*D*2)
    A(f"s_sub_u32 s31, s31, {4*RD}")
    A("s_lshl_b32 s5, s31, 13"); A("s_movk_i32 s6, 1024"); A("s_mov_b32 s29, 1")
    A.label("P1_XD")
    A("s_lshl_b32 s28, s3, 13")
    for v in range(8):
        A(f"s_add_u32 m0, s28, {v*1024}")
        A(f"buffer_load_dwordx4 v1, s[16:19], s5 offen lds")
        if v < 7: A("s_add_u32 s5, s5, s6")
    A("v_lshlrev_b32 v4, 3, v0"); A("v_add_u32 v4, s28, v4")
    for v in range(8):
        A(f"s_waitcnt vmcnt({7-v})")
        A(f"ds_read_b64_tr_b16 v[{AR+4*v}:{AR+4*v+1}], v4 offset:{v*1024}")
        A(f"ds_read_b64_tr_b16 v[{AR+4*v+2}:{AR+4*v+3}], v4 offset:{v*1024+512}")
    A("s_branch P1_CORE")
    A.label("P1_G")
    A(f"s_sub_u32 s4, s2, {RG}"); A("s_and_b32 s5, s4, 7"); A("s_mul_i32 s5, s5, 11"); A("s_lshr_b32 s4, s4, 3"); A("s_add_u32 s4, s4, s5")
    A("s_cmp_ge_u32 s4, 86"); A("s_cbranch_scc1 P1_DONE")
    A("s_cmp_ge_u32 s4, 43")
    A("s_cselect_b32 s16, s42, s40"); A("s_cselect_b32 s17, s43, s41"); A("s_cselect_b32 s88, 1, 0"); A("s_cselect_b32 s5, 43, 0")
    A(f"s_mov_b32 s18, {F*D*2}"); A("s_mov_b32 s19, 0x20000")
    A("s_sub_u32 s4, s4, s5")
    A("v_lshrrev_b32 v4, 2, v0"); A(f"v_mul_u32_u24 v4, {2*F}, v4"); A("v_and_b32 v5, 3, v0"); A("v_xor_b32 v5, v5, v3"); A("v_lshl_add_u32 v4, v5, 4, v4")
    A("s_lshl_b32 s5, s4, 6"); A(f"s_mul_i32 s6, s3, {8*16*2*F}"); A("s_add_u32 s5, s5, s6")
    A("s_lshl_b32 s28, s3, 13")
    for i in range(8):
        A(f"s_add_u32 m0, s28, {i*1024}")
        A(f"buffer_load_dwordx4 v4, s[16:19], s5 offen lds")
        if i < 7: A(f"s_add_u32 s5, s5, {16*2*F}")
    A("s_lshl_b32 s89, s4, 2"); A("s_add_u32 s89, s89, s3")
    A("v_lshrrev_b32 v5, 2, v2"); A("v_xor_b32 v5, s3, v5"); A("v_lshlrev_b32 v5, 4, v5"); A("v_lshl_add_u32 v5, v2, 6, v5"); A("v_lshl_add_u32 v5, v3, 12, v5")
    A("v_mov_b32 v15, -1"); A("v_mov_b32 v8, 0xffff"); A("v_cmp_eq_u32 vcc, 0, v0"); A("v_cndmask_b32 v15, v15, v8, vcc")
    A("s_mov_b32 s29, 2")
    A("s_waitcnt vmcnt(0)"); A("s_barrier")
    for e in range(8):
        A(f"ds_read_b128 v[{DR+4*e}:{DR+4*e+3}], v5 offset:{(e%4)*1024+(e//4)*16384}")
    for e2 in range(4):
        A(f"s_waitcnt lgkmcnt({6-2*e2})")
        for v in range(8):
            A(f"v_perm_b32 v{AR+4*v+e2}, v{DR+4*(2*e2+1)+v//2}, v{DR+4*(2*e2)+v//2}, s{58+v%2}")
    A("s_branch P1_CORE")
    A.label("P1_Q")
    A(f"s_sub_u32 s31, s31, {4*RQ}")
    A("s_and_b32 s88, s31, 1"); A("s_lshr_b32 s89, s31, 1")
    A("s_and_b32 s5, s89, 15"); A("s_lshl_b32 s5, s5, 2"); A("s_add_u32 s5, s5, s88")
    A("s_add_u32 s6, s5, 2")
    A("s_cmp_lt_u32 s89, 16")
    A("s_cselect_b32 s4, 0x3f80, 0"); A("s_cselect_b32 s7, 0, 0x3f80")
    A("v_mov_b32 v4, s4"); A("v_mov_b32 v5, s7")
    for par in range(2):
        A(f"v_cmp_eq_u32 vcc, s{5+par}, v0")
        A(f"v_cndmask_b32 v{DR+4*par}, 0, v4, vcc"); A(f"v_cndmask_b32 v{DR+4*par+1}, 0, v5, vcc")
        A(f"v_lshlrev_b32 v{DR+4*par+2}, 16, v{DR+4*par}"); A(f"v_lshlrev_b32 v{DR+4*par+3}, 16, v{DR+4*par+1}")
    for v in range(8):
        par = v % 2; half = (v//2) % 2
        for e2 in range(4):
            if e2 % 2 == v//4: A(f"v_mov_b32 v{AR+4*v+e2}, v{DR+4*par+2*half+e2//2}")
            else: A(f"v_mov_b32 v{AR+4*v+e2}, 0")
    A(f"s_add_u32 s89, s89, {NCH}")
    A("v_mov_b32 v15, -1")
    A("s_mov_b32 s29, 2")
    A.label("P1_CORE")
    A("v_cmp_eq_u32 vcc, 0, v2"); A("v_cndmask_b32 v8, 0, -1, vcc")
    A("s_waitcnt vmcnt(0) lgkmcnt(0)")
    stamp(A, "p1_in")
    def S1(v):
        a = vr(AR+4*v, 4)
        return [f"{MF} {vr(DR+8*v,4)}, {a}, {vr(CR,4)}, 0", f"{MF} {vr(DR+8*v+4,4)}, {a}, {vr(CR+4,4)}, 0"]
    def TW(v):
        L = []; re = DR+8*v; im = re+4; t = 152
        for r in range(4): L.append(f"v_mul_f32 v{t+r}, v{re+r}, v{CR+12+r}")
        for r in range(4): L.append(f"v_mul_f32 v{re+r}, v{re+r}, v{CR+8+r}")
        for r in range(4): L.append(f"v_fma_f32 v{re+r}, -v{im+r}, v{CR+12+r}, v{re+r}")
        for r in range(4): L.append(f"v_fma_f32 v{im+r}, v{im+r}, v{CR+8+r}, v{t+r}")
        b = AR+4*v; bs = 144 + 4*(v % 2)
        for i in range(4): L.append(f"v_cvt_pk_bf16_f32 v{b+i}, v{re+2*i}, v{re+2*i+1}")
        for i in range(4): L.append(f"v_and_b32 v{bs+i}, v{b+i}, v8")
        return L
    def S2(v):
        b = vr(AR+4*v, 4); bs = vr(144+4*(v % 2), 4); re = vr(DR+8*v, 4); im = vr(DR+8*v+4, 4)
        return [f"{MF} {re}, {vr(CR+16,4)}, {b}, 0", f"{MF} {im}, {vr(CR+20,4)}, {b}, 0",
                f"{MF} {re}, {vr(CR+24,4)}, {bs}, {re}", f"{MF} {im}, {vr(CR+28,4)}, {bs}, {im}"]
    for m in S1(0) + S1(1): A(m)
    for v in range(8):
        mf = (S2(v-1) if v >= 1 else []) + (S1(v+2) if v+2 < 8 else [])
        interleave(A, TW(v), mf, every=4, lead=1 if v else 0)
    for m in S2(7): A(m)
    A("s_cmp_eq_u32 s29, 2"); A("s_cbranch_scc1 P1_OUTG")
    for v2 in range(4):
        for e in range(8):
            r, part = e//2, e % 2
            A(f"v_cvt_pk_bf16_f32 v{OR_+4*e+v2}, v{DR+16*v2+4*part+r}, v{DR+16*v2+8+4*part+r}")
            if v2 == 3: A(f"ds_write_b128 v13, v[{OR_+4*e}:{OR_+4*e+3}] offset:{e*16}")
    A("s_cmp_eq_u32 s29, 1"); A("s_cbranch_scc1 P1_OUTD")
    A("v_lshrrev_b32 v4, 1, v2"); A("v_and_b32 v5, 1, v3"); A("v_lshlrev_b32 v5, 2, v5"); A("v_xor_b32 v4, v4, v5"); A("v_lshlrev_b32 v4, 4, v4")
    A("v_and_b32 v5, 1, v2"); A("v_mul_u32_u24 v5, 9216, v5"); A("v_add_u32 v4, v4, v5"); A("v_mul_u32_u24 v5, 144, v3"); A("v_add_u32 v4, v4, v5")
    A("s_and_b32 s4, s3, 2"); A("s_mul_i32 s4, s4, 9216"); A("s_and_b32 s5, s3, 1"); A(f"s_mul_i32 s6, s5, {32*144}"); A("s_add_u32 s4, s4, s6"); A(f"s_add_u32 s4, s4, {OUT}")
    A("v_add_u32 v4, s4, v4")
    A("v_lshlrev_b32 v5, 11, v3"); A("v_lshl_add_u32 v5, v2, 4, v5")
    A("s_lshl_b32 s5, s5, 16"); A("s_lshr_b32 s6, s2, 2"); A("s_lshl_b32 s6, s6, 17"); A("s_add_u32 s5, s5, s6")
    A("s_bfe_u32 s6, s31, 0x30001"); A("s_lshl_b32 s6, s6, 8"); A("s_add_u32 s5, s5, s6")
    if XT0: A(f"s_add_u32 s5, s5, {XT0}")
    A("s_waitcnt lgkmcnt(0)"); A("s_barrier")
    for b in range(8): A(f"ds_read_b128 v[{OR_+4*b}:{OR_+4*b+3}], v4 offset:{b*576}")
    SA = 144
    A("v_cmp_ne_u32 vcc, 0, v0"); A("v_cndmask_b32 v9, 0, 1.0, vcc")
    for v in range(8): A(f"v_mul_f32 v{SA+v}, v{DR+8*v+4}, v9")
    for v in range(8): A(f"v_mul_f32 v{SA+v}, v{SA+v}, v{DR+8*v+4}")
    for b in range(8):
        A(f"s_waitcnt lgkmcnt({7-b})")
        A(f"buffer_store_dwordx4 v[{OR_+4*b}:{OR_+4*b+3}], v5, s[8:11], s5 offen {SC}")
        if b < 7: A("s_add_u32 s5, s5, 8192")
    for i in (0, 1, 2, 3, 5, 6, 7):
        for v in range(8): A(f"v_fmac_f32 v{SA+v}, v{DR+8*v+i}, v{DR+8*v+i}")
    for i in range(4): A(f"v_permlane32_swap_b32 v{SA+i}, v{SA+4+i}")
    for i in range(4): A(f"v_add_f32 v{SA+i}, v{SA+i}, v{SA+4+i}")
    for i in range(2): A(f"v_permlane16_swap_b32 v{SA+i}, v{SA+2+i}")
    for i in range(2): A(f"v_add_f32 v{SA+i}, v{SA+i}, v{SA+2+i}")
    A(f"v_add_f32_dpp v10, v{SA}, v{SA} row_ror:8 row_mask:0xf bank_mask:0x3")
    A(f"v_add_f32_dpp v10, v{SA+1}, v{SA+1} row_ror:8 row_mask:0xf bank_mask:0xc")
    A("v_add_f32_dpp v10, v10, v10 row_half_mirror row_mask:0xf bank_mask:0xf")
    A("v_add_f32_dpp v10, v10, v10 quad_perm:[1,0,3,2] row_mask:0xf bank_mask:0xf")
    A("v_add_f32_dpp v10, v10, v10 quad_perm:[2,3,0,1] row_mask:0xf bank_mask:0xf")
    A("v_lshrrev_b32 v4, 3, v0"); A("v_lshlrev_b32 v4, 2, v4"); A("v_mov_b32 v5, 0")
    A("s_lshl_b32 s5, s31, 5"); A(f"s_add_u32 s5, s5, {SSQ1}"); A(f"s_add_u32 s6, s5, {SSQ3-SSQ1}")
    A("s_mov_b32 exec_lo, 0x01010101"); A("s_mov_b32 exec_hi, 0x01010101")
    A(f"buffer_store_dword v10, v4, s[8:11], s5 offen {SC}")
    A(f"buffer_store_dword v5, v4, s[8:11], s6 offen {SC}")
    A("s_mov_b64 exec, -1")
    A("s_branch P1_DONE")
    A.label("P1_OUTD")
    A("v_mov_b32 v5, v1")
    A("s_lshl_b32 s5, s31, 10"); A(f"s_add_u32 s5, s5, {WDP}"); A(f"s_mov_b32 s6, {NCH*1024}")
    A("s_branch P1_OUTC")
    A.label("P1_OUTG")
    A("s_nop 7")
    for v in range(8):
        for r in range(4): A(f"v_cvt_pk_bf16_f32 v{OR_+4*v+r}, v{DR+8*v+r}, v{DR+8*v+4+r}")
        A(f"v_and_b32 v{OR_+4*v}, v{OR_+4*v}, v15")
        A(f"ds_write_b128 v13, v[{OR_+4*v}:{OR_+4*v+3}] offset:{v*16}")
    A("v_lshrrev_b32 v5, 3, v0"); A("v_lshlrev_b32 v5, 8, v5"); A("v_and_b32 v4, 7, v0"); A("v_lshl_add_u32 v5, v4, 4, v5")
    A("s_lshl_b32 s5, s89, 14"); A("s_lshl_b32 s6, s88, 7"); A("s_add_u32 s5, s5, s6"); A(f"s_add_u32 s5, s5, {WGU}"); A("s_movk_i32 s6, 2048")
    A.label("P1_OUTC")
    A("s_waitcnt lgkmcnt(0)")
    for b in range(8): A(f"ds_read_b128 v[{OR_+4*b}:{OR_+4*b+3}], v14 offset:{b*1152}")
    for b in range(8):
        A(f"s_waitcnt lgkmcnt({7-b})")
        A(f"buffer_store_dwordx4 v[{OR_+4*b}:{OR_+4*b+3}], v5, s[8:11], s5 offen {SC}")
        if b < 7: A("s_add_u32 s5, s5, s6")
    A("s_branch P1_DONE")
    A.label("P1_W")
    srd(A, 16, 34, 35, S*257*2); srd(A, 20, 36, 37, S*257*2)
    A(f"s_sub_u32 s31, s31, {4*RW}")
    A("s_and_b32 s88, s31, 1"); A("s_bfe_u32 s89, s31, 0x30001"); A("s_lshr_b32 s90, s31, 4")
    A("s_lshl_b32 s5, s89, 8"); A("s_lshl_b32 s6, s90, 3"); A("s_add_u32 s5, s5, s6"); A("s_mul_i32 s5, s5, 514")
    A("s_lshl_b32 s6, s88, 8"); A("s_add_u32 s5, s5, s6"); A("s_add_u32 s5, s5, 2")
    A("v_lshlrev_b32 v4, 2, v0")
    for r in range(4):
        if r == 3: A("s_waitcnt vmcnt(40)")
        for u in range(8):
            A(f"buffer_load_dword v{DR+4*u+r}, v4, s[16:19], s5 offen offset:{u*514}")
            A(f"buffer_load_dword v{DR+32+4*u+r}, v4, s[20:23], s5 offen offset:{u*514}")
        if r < 3: A(f"s_add_u32 s5, s5, {64*514}")
    A("v_lshrrev_b32 v5, 3, v0"); A("v_lshlrev_b32 v5, 14, v5"); A("v_and_b32 v4, 7, v0"); A("v_lshl_add_u32 v5, v4, 4, v5")
    A("s_lshr_b32 s5, s90, 1"); A("s_lshl_b32 s5, s5, 11"); A("s_lshl_b32 s6, s89, 8"); A("s_add_u32 s5, s5, s6")
    A("s_and_b32 s6, s90, 1"); A("s_lshl_b32 s6, s6, 7"); A("s_add_u32 s5, s5, s6"); A("s_lshl_b32 s6, s88, 20"); A("s_add_u32 s5, s5, s6")
    A(f"s_add_u32 s5, s5, {WT}")
    A("s_waitcnt vmcnt(0)")
    stamp(A, "p1_in")
    for kk in range(2):
        for u in range(8):
            for r in range(4): A(f"v_perm_b32 v{OR_+32*kk+4*u+r}, v{DR+32+4*u+r}, v{DR+4*u+r}, s{58+kk}")
            A(f"ds_write_b128 v13, v[{OR_+32*kk+4*u}:{OR_+32*kk+4*u+3}] offset:{kk*36864+u*16}")
        A("s_waitcnt lgkmcnt(4)")
    A("s_waitcnt lgkmcnt(0)")
    for kk in range(2):
        for b in range(8): A(f"ds_read_b128 v[{OR_+32*kk+4*b}:{OR_+32*kk+4*b+3}], v14 offset:{kk*36864+b*1152}")
        for b in range(8):
            A(f"s_waitcnt lgkmcnt({7-b})")
            A(f"s_add_u32 s6, s5, {b*8*16384+kk*8192}")
            A(f"buffer_store_dwordx4 v[{OR_+32*kk+4*b}:{OR_+32*kk+4*b+3}], v5, s[8:11], s6 offen {SC}")
    A("s_branch P1_DONE")
    A.label("P1_SPARE")
    A("s_cmp_lg_u32 s31, 1020"); A("s_cbranch_scc1 P1_DONE")
    A("v_lshlrev_b32 v4, 7, v0"); A("v_mov_b32 v5, 0"); A(f"s_mov_b32 s5, {SYNC}")
    for i in range(9):
        A(f"buffer_store_dword v5, v4, s[8:11], s5 offen {SC}")
        if i < 8: A("s_add_u32 s5, s5, 8192")
    A("s_waitcnt vmcnt(0)")
    A("v_mov_b32 v4, 1"); A("s_mov_b64 exec, 1")
    A(f"buffer_store_dword v4, v5, s[24:27], 0 offen {SC}")
    A("s_mov_b64 exec, -1")
    A.label("P1_DONE")
    stamp(A, "p1_st")
    arrive(A, 0, first=True)
    stamp(A, "p1_arr")
    A("s_cmp_lg_u32 s29, 1"); A("s_cbranch_scc1 P1_END")
    A("v_lshrrev_b32 v4, 2, v2"); A("v_lshlrev_b32 v4, 10, v4"); A("v_and_b32 v5, 3, v2"); A("v_lshl_add_u32 v4, v5, 5, v4"); A("v_lshl_add_u32 v4, v3, 3, v4")
    A("v_add_u32 v4, s28, v4")
    for b in range(8):
        for h in range(2): A(f"ds_read_b64_tr_b16 v[{OR_+4*b+2*h}:{OR_+4*b+2*h+1}], v4 offset:{h*4096+b*128}")
        if b == 5: A("s_waitcnt lgkmcnt(8)")
    A("s_lshl_b32 s5, s31, 10"); A(f"s_add_u32 s5, s5, {WDT}")
    A("s_waitcnt lgkmcnt(0)")
    for b in range(8):
        A(f"buffer_store_dwordx4 v[{OR_+4*b}:{OR_+4*b+3}], v1, s[8:11], s5 offen {SC}")
        if b < 7: A(f"s_add_u32 s5, s5, {NCH*1024}")
    A("s_nop 1")
    A.label("P1_END")
    srd(A, 20, 46, 47, 2*MB)
    for i in range(3):
        A(f"s_add_u32 s4, s57, {i}"); A("s_lshl_b32 s5, s4, 14"); A(f"s_add_u32 s5, s5, {WGU}")
        A(f"s_cmp_lt_u32 s4, {NCH}"); A(f"s_cselect_b32 s{88+i}, s5, {WS_USED}")

def w1_loads(vm, ks):
    L = []
    for i in range(3):
        def f(i=i):
            vm.issue(f"buffer_load_dwordx4 a[{(ks*3+i)*4}:{(ks*3+i)*4+3}], v12, s[8:11], s{88+i} offen offset:{(ks%4)*1024} {SC}", ('w1', ks))
            if ks % 4 == 3: vm.A(f"s_add_u32 s{88+i}, s{88+i}, 4096")
        L.append(f)
    return L

def cmul_mix(re, im, tw, t):
    L = []
    n = len(re)
    for i in range(n): L.append(f"v_fma_mix_f32 v{t[i]}, v{re[i]}, v{tw[i]}, 0 op_sel:[0,1,0] op_sel_hi:[0,1,0]")
    for i in range(n): L.append(f"v_fma_mix_f32 v{re[i]}, v{re[i]}, v{tw[i]}, 0 op_sel:[0,0,0] op_sel_hi:[0,1,0]")
    for i in range(n): L.append(f"v_fma_mix_f32 v{re[i]}, -v{im[i]}, v{tw[i]}, v{re[i]} op_sel:[0,1,0] op_sel_hi:[0,1,0]")
    for i in range(n): L.append(f"v_fma_mix_f32 v{im[i]}, v{im[i]}, v{tw[i]}, v{t[i]} op_sel:[0,0,0] op_sel_hi:[0,1,0]")
    return L

def gen_col(A, vm, layer):
    LB = 131072
    XR, SQ = 16, 24
    F64r, F64i, T1, T2, F32r, F32i, F64n, F32n, WR = 32, 40, 48, 56, 64, 72, 80, 88, 96
    XF, Z, DD, U, TT, WF = 104, 120, 152, 168, 176, 184
    A("s_lshl_b32 s24, s3, 13"); A(f"s_add_u32 s24, s24, {TBL_COL}"); A("s_add_u32 s25, s24, 4096"); A(f"s_mov_b32 s26, {TBL_COL+32768}")
    for i in range(4): A(f"buffer_load_dwordx4 v[{F64r+4*i}:{F64r+4*i+3}], v1, s[12:15], s24 offen offset:{i*1024}")
    for i in range(4): A(f"buffer_load_dwordx4 v[{T1+4*i}:{T1+4*i+3}], v1, s[12:15], s25 offen offset:{i*1024}")
    for i in range(4): A(f"buffer_load_dwordx4 v[{F32r+4*i}:{F32r+4*i+3}], v1, s[12:15], s26 offen offset:{i*1024}")
    A("s_bfe_u32 s4, s52, 0x40002"); A("s_lshr_b32 s5, s52, 6"); A("s_lshl_b32 s5, s5, 2"); A("s_and_b32 s6, s52, 3"); A("s_add_u32 s5, s5, s6")
    A("s_lshl_b32 s6, s5, 5"); A("s_add_u32 s6, s6, s4")
    A("s_sub_u32 s7, 512, s6"); A("s_sub_u32 s27, s6, 240")
    A("s_cmp_eq_u32 s4, 0"); A("s_cselect_b32 s7, s27, s7")
    A("s_cmp_lt_u32 s5, 8"); A("s_cselect_b32 s6, s6, s7")
    A("s_cmp_eq_u32 s52, 0"); A("s_cselect_b32 s6, 256, s6"); A("s_cselect_b32 s91, 0, 1.0")
    A("s_sub_u32 s6, s6, 1"); A("s_lshl_b32 s6, s6, 13"); A("s_lshl_b32 s7, s3, 11"); A("s_add_u32 s31, s6, s7"); A(f"s_add_u32 s31, s31, {WT}")
    def wload():
        for i in range(2): vm.issue(f"buffer_load_dwordx4 v[{WR+4*i}:{WR+4*i+3}], v1, s[8:11], s31 offen offset:{i*1024} {SC}", 'W')
    def wunpack():
        for i in range(8):
            A(f"v_lshlrev_b32 v{WF+i}, 16, v{WR+i}"); A(f"v_and_b32 v{WF+8+i}, s94, v{WR+i}")
    if layer == 1: wload()
    A("v_lshrrev_b32 v8, 1, v2"); A("v_lshlrev_b32 v8, 17, v8"); A("v_and_b32 v9, 1, v2"); A("v_lshl_add_u32 v8, v9, 10, v8")
    A("v_and_b32 v10, 1, v3"); A("v_lshl_add_u32 v8, v10, 5, v8"); A("v_lshrrev_b32 v11, 1, v3"); A("v_lshl_add_u32 v8, v11, 4, v8")
    A("v_lshlrev_b32 v9, 8, v2"); A("v_lshl_add_u32 v9, v3, 4, v9")
    A("v_lshlrev_b32 v10, 3, v10"); A("v_lshl_add_u32 v10, v11, 8, v10"); A("v_lshl_add_u32 v10, v2, 4, v10")
    A("s_lshr_b32 s6, s3, 1"); A("s_lshl_b32 s6, s6, 11"); A("s_and_b32 s7, s3, 1"); A("s_lshl_b32 s7, s7, 9"); A("s_add_u32 s6, s6, s7"); A(f"s_add_u32 s6, s6, {LB}")
    A("v_add_u32 v10, s6, v10"); A(f"v_add_u32 v11, {LB}, v1")
    A("s_lshr_b32 s5, s52, 2"); A("s_and_b32 s6, s52, 3"); A("s_lshl_b32 s6, s6, 1"); A("s_and_b32 s7, s52, 4"); A("s_xor_b32 s6, s6, s7")
    A("s_lshl_b32 s5, s5, 11"); A("s_lshl_b32 s6, s6, 5"); A("s_add_u32 s5, s5, s6"); A("s_lshl_b32 s6, s3, 8"); A("s_add_u32 s5, s5, s6")
    A(f"s_add_u32 s27, s5, {XT0 if layer == 0 else XT2}"); A(f"s_add_u32 s28, s27, {8*131072}")
    A("s_lshl_b32 s6, s3, 6"); A(f"s_add_u32 s29, s6, {SSQ1 if layer == 0 else SSQ3}"); A("s_add_u32 s30, s29, 4096")
    A(f"s_mov_b32 s92, {F32H(1/512)}"); A(f"v_mov_b32 v13, {F32H(EPS)}")
    A("s_mov_b32 s93, 0x80008000"); A("s_mov_b32 s94, 0xffff0000")
    A("s_waitcnt vmcnt(0)"); vm.reset()
    for i in range(8): A(f"v_xor_b32 v{F64n+i}, s93, v{F64i+i}")
    for i in range(8): A(f"v_xor_b32 v{F32n+i}, s93, v{F32i+i}")
    if layer == 1: wunpack()
    wait(A, 2*layer)
    stamp(A, f"c{layer}_go")
    for nt in range(2):
        vm.issue(f"buffer_load_dwordx4 v[{SQ+4*nt}:{SQ+4*nt+3}], v9, s[8:11], s{29+nt} offen {SC}", 'ssq')
    for nt in range(2):
        vm.issue(f"buffer_load_dwordx4 v[{XR+4*nt}:{XR+4*nt+3}], v8, s[8:11], s{27+nt} offen {SC}", 'x')
    if layer == 0:
        wload()
        for ks in range(OPT['w1a']):
            for f in w1_loads(vm, ks): f()
    vm.wait(['ssq'])
    for i in range(8): A(f"v_fma_f32 v{SQ+i}, v{SQ+i}, s92, v13")
    for i in range(8): A(f"v_rsq_f32 v{SQ+i}, v{SQ+i}")
    vm.wait(['x'])
    for nt in range(2):
        for i in range(2): A(f"v_permlane16_swap_b32 v{XR+4*nt+i}, v{XR+4*nt+2+i}")
    for i in range(8): A(f"v_mul_f32 v{TT+i}, s91, v{SQ+i}")
    for i in range(8):
        src = XR + i; d = XF + 2*i
        A(f"v_lshlrev_b32 v{d}, 16, v{src}"); A(f"v_and_b32 v{d+1}, s94, v{src}")
    for nt in range(2):
        for r in range(4): A(f"v_mul_f32 v{DD+8*nt+r}, v{XF+8*nt+r}, v{SQ+4*nt+r}")
        for r in range(4): A(f"v_mul_f32 v{DD+8*nt+4+r}, v{XF+8*nt+4+r}, v{TT+4*nt+r}")
    def exchange(base):
        for t in range(2):
            for part in range(2):
                d = DD+8*t+4*part; u = U+4*t+2*part
                A(f"v_cvt_pk_bf16_f32 v{u}, v{d}, v{d+1}"); A(f"v_cvt_pk_bf16_f32 v{u+1}, v{d+2}, v{d+3}")
                A(f"ds_write_b64 v10, v[{u}:{u+1}] offset:{base + t*4096 + part*1024}")
        A("s_waitcnt lgkmcnt(0)"); A("s_barrier")
        for i in range(8): A(f"ds_read_b128 v[{Z+4*i}:{Z+4*i+3}], v11 offset:{base + i*1024}")
    exchange(0)
    def zf(t, ks, part): return vr(Z+4*((t*2+ks)*2+part), 4)
    def dd(t, part): return vr(DD+8*t+4*part, 4)
    for t in range(2):
        for ks in range(2):
            A(f"s_waitcnt lgkmcnt({6-2*(t*2+ks)})")
            c0 = "0" if ks == 0 else dd(t, 0); c1 = "0" if ks == 0 else dd(t, 1)
            A(f"{MF} {dd(t,0)}, {zf(t,ks,0)}, {vr(F64r+4*ks,4)}, {c0}")
            A(f"{MF} {dd(t,1)}, {zf(t,ks,0)}, {vr(F64i+4*ks,4)}, {c1}")
            A(f"{MF} {dd(t,0)}, {zf(t,ks,1)}, {vr(F64n+4*ks,4)}, {dd(t,0)}")
            A(f"{MF} {dd(t,1)}, {zf(t,ks,1)}, {vr(F64r+4*ks,4)}, {dd(t,1)}")
    def tw(twr):
        for t in range(2):
            for x in cmul_mix([DD+8*t+r for r in range(4)], [DD+8*t+4+r for r in range(4)], [twr+4*t+r for r in range(4)], [TT+4*t+r for r in range(4)]): A(x)
    def pack():
        for part in range(2):
            for t in range(2):
                d = DD+8*t+4*part; u = U+4*part+2*t
                A(f"v_cvt_pk_bf16_f32 v{u}, v{d}, v{d+1}"); A(f"v_cvt_pk_bf16_f32 v{u+1}, v{d+2}, v{d+3}")
    tw(T1); pack()
    ur, ui = vr(U, 4), vr(U+4, 4)
    for t in range(2):
        A(f"{MF} {dd(t,0)}, {vr(F32r+4*t,4)}, {ur}, 0"); A(f"{MF} {dd(t,1)}, {vr(F32i+4*t,4)}, {ur}, 0")
        A(f"{MF} {dd(t,0)}, {vr(F32n+4*t,4)}, {ui}, {dd(t,0)}"); A(f"{MF} {dd(t,1)}, {vr(F32r+4*t,4)}, {ui}, {dd(t,1)}")
    if layer == 0:
        vm.wait(['W']); wunpack()
    for t in range(2):
        re = [DD+8*t+r for r in range(4)]; im = [DD+8*t+4+r for r in range(4)]
        for r in range(4): A(f"v_mul_f32 v{TT+r}, v{re[r]}, v{WF+8+4*t+r}")
        for r in range(4): A(f"v_mul_f32 v{re[r]}, v{re[r]}, v{WF+4*t+r}")
        for r in range(4): A(f"v_fma_f32 v{re[r]}, -v{im[r]}, v{WF+8+4*t+r}, v{re[r]}")
        for r in range(4): A(f"v_fma_f32 v{im[r]}, v{im[r]}, v{WF+4*t+r}, v{TT+r}")
    pack()
    for t in range(2):
        A(f"{MF} {dd(t,0)}, {ur}, {vr(F32r+4*t,4)}, 0"); A(f"{MF} {dd(t,1)}, {ur}, {vr(F32n+4*t,4)}, 0")
        A(f"{MF} {dd(t,0)}, {ui}, {vr(F32i+4*t,4)}, {dd(t,0)}"); A(f"{MF} {dd(t,1)}, {ui}, {vr(F32r+4*t,4)}, {dd(t,1)}")
    tw(T2)
    exchange(8192)
    for t in range(2):
        for ks in range(2):
            A(f"s_waitcnt lgkmcnt({6-2*(t*2+ks)})")
            c0 = "0" if ks == 0 else dd(t, 0); c1 = "0" if ks == 0 else dd(t, 1)
            A(f"{MF} {dd(t,0)}, {vr(F64r+4*ks,4)}, {zf(t,ks,0)}, {c0}")
            A(f"{MF} {dd(t,1)}, {vr(F64n+4*ks,4)}, {zf(t,ks,0)}, {c1}")
            A(f"{MF} {dd(t,0)}, {vr(F64i+4*ks,4)}, {zf(t,ks,1)}, {dd(t,0)}")
            A(f"{MF} {dd(t,1)}, {vr(F64r+4*ks,4)}, {zf(t,ks,1)}, {dd(t,1)}")
    A(f"s_add_u32 s27, s27, {XT1-XT0}"); A(f"s_add_u32 s28, s28, {XT1-XT0}")
    for t in range(2):
        for r in range(4): A(f"v_add_f32 v{DD+8*t+r}, v{DD+8*t+r}, v{XF+8*t+r}")
        for r in range(4): A(f"v_fma_f32 v{DD+8*t+4+r}, v{DD+8*t+4+r}, s91, v{XF+8*t+4+r}")
        u = U+4*t; d = DD+8*t
        for i in range(4): A(f"v_cvt_pk_bf16_f32 v{u+i}, v{d+2*i}, v{d+2*i+1}")
        for i in range(2): A(f"v_permlane16_swap_b32 v{u+i}, v{u+2+i}")
        A(f"buffer_store_dwordx4 v[{u}:{u+3}], v8, s[8:11], s{27+t} offen {SC}")
    stamp(A, f"c{layer}_st")
    arrive(A, 2*layer+1); vm.reset()
    stamp(A, f"c{layer}_arr")

def w2reg(k, i):
    return vr(144+16*k+4*i, 4) if k < 7 else vr(192+16*(k-7)+4*i, 4, 'a')

def gen_ffn(A, vm, layer):
    ACC, XB = 16, 112
    L = layer
    w1done = set(range(OPT['w1a'])) if L == 0 else set(range(16))
    if L == 0:
        for ks in range(OPT['w1a'], OPT['w1a'] + OPT['w1b']):
            for f in w1_loads(vm, ks): f()
    A(f"s_lshl_b32 s28, s53, 17"); A(f"s_add_u32 s28, s28, {XT1 if L == 0 else XT3}"); A("s_lshl_b32 s29, s3, 11"); A("s_add_u32 s28, s28, s29")
    A("v_lshlrev_b32 v8, 11, v3"); A("v_lshl_add_u32 v8, v2, 3, v8"); A("v_and_b32 v9, 1, v3"); A("v_lshl_add_u32 v8, v9, 7, v8")
    A("v_xor_b32 v9, 128, v8"); A("v_add_u32 v10, 0x10000, v8"); A("v_add_u32 v11, 0x10000, v9")
    A(f"s_mul_i32 s4, s3, {11*4096}")
    A(f"s_mul_i32 s24, s56, {NCH*1024}"); A("s_add_u32 s24, s24, s4"); A(f"s_add_u32 s24, s24, {WDP if L == 0 else WDT}")
    A(f"s_mul_i32 s25, s55, {NCH*1024}"); A("s_add_u32 s25, s25, s4"); A(f"s_add_u32 s25, s25, {H1 if L == 0 else H2}")
    for u in range(4): A(f"s_xor_b32 s{92+u}, s3, {u}"); A(f"s_lshl_b32 s{92+u}, s{92+u}, 8")
    if L == 1:
        A("s_lshl_b32 s26, s56, 16"); A("s_lshl_b32 s4, s3, 12"); A("s_add_u32 s26, s26, s4"); A(f"s_add_u32 s26, s26, {QF}")
    def frag(vmx, dst, base, k, i, rot, tag):
        va = "v7" if k == 10 else "v6"
        if rot:
            A(f"s_add_u32 s4, s{base}, s{92+i}")
            vmx.issue(f"buffer_load_dwordx4 {dst}, {va}, s[8:11], s4 offen {SC}", tag)
        else:
            vmx.issue(f"buffer_load_dwordx4 {dst}, {va}, s[8:11], s{base} offen offset:{i*256} {SC}", tag)
        if i == 3: A(f"s_add_u32 s{base}, s{base}, 4096")
    def w2_list(vmx): return [(lambda k=k, i=i: frag(vmx, w2reg(k, i), 24, k, i, L == 0, ('w2', k))) for k in range(11) for i in range(4)]
    def q_list(vmx):
        Lq = []
        for a in range(4):
            for ks in range(4):
                def f(a=a, ks=ks):
                    vmx.issue(f"buffer_load_dwordx4 a[{16*ks+4*a}:{16*ks+4*a+3}], v12, s[8:11], s26 offen offset:{ks*1024} {SC}", 'q')
                    if ks == 3: A("s_add_u32 s26, s26, 16384")
                Lq.append(f)
        return Lq
    def dma_list(vmx, ks):
        def f0():
            A("s_mov_b32 m0, s29")
            vmx.issue(f"buffer_load_dwordx4 v1, s[8:11], s28 offen {SC} lds", ('x', ks))
        def f1():
            vmx.issue(f"buffer_load_dwordx4 v1, s[8:11], s28 offen offset:1024 {SC} lds", ('x', ks))
            A("s_add_u32 s28, s28, 8192"); A("s_add_u32 s29, s29, 8192")
        return [f0, f1]
    def rd(ks, t, h, dst):
        return f"ds_read_b64_tr_b16 v[{dst+2*h}:{dst+2*h+1}], v{8+h+2*(ks//8)} offset:{(ks%8)*8192+t*256}"
    nlate = OPT['w2late'] if L == 0 else 0
    wait(A, 2*L+1)
    stamp(A, f"g{L}_go")
    A("s_cmp_eq_u32 s54, 15"); A(f"s_cbranch_scc1 G1_STATS{L}")
    import copy
    vs = VM(A); vs.ops = list(vm.ops); vs.done = vm.done
    for ks in range(OPT['dma0']):
        for f in dma_list(vm, ks): f()
    fast = [f for ks in range(OPT['dma0'], 16) for f in dma_list(vm, ks)]
    slow = []
    if L == 0:
        for ks in range(OPT['w1a'] + OPT['w1b'], 16): slow += w1_loads(vm, ks)
    allw2 = w2_list(vm)
    slow += allw2[:44-nlate]
    if L == 1: slow += q_list(vm)
    sched = {}
    for i, f in enumerate(fast): sched.setdefault(i, []).append(f)
    s0 = len(fast); s1 = OPT.get('slowend', 120)
    for i, f in enumerate(slow): sched.setdefault(s0 + i*(s1-s0)//len(slow), []).append(f)
    bars = {0: [1], 1: [2, 3, 4], 4: list(range(5, 13)), 12: [13, 14, 15]}
    vm.wait([('x', 0)]); A("s_barrier")
    stamp(A, f"g{L}_x0")
    for t in range(8):
        for h in range(2): A(rd(0, t, h, XB+4*t))
    for ks in range(16):
        if ks not in w1done: vm.wait([('w1', ks)])
        if ks in bars:
            vm.wait([('x', k) for k in bars[ks]]); A("s_barrier")
        for t in range(8):
            A(f"s_waitcnt lgkmcnt({14 if ks < 15 else 14-2*t})")
            for i in range(3):
                acc = vr(ACC+(i*8+t)*4, 4)
                A(f"{MF} {acc}, a[{(ks*3+i)*4}:{(ks*3+i)*4+3}], {vr(XB+4*t,4)}, {'0' if ks == 0 else acc}")
                if i == 0:
                    for f in sched.get(ks*8+t, []): f()
            if ks < 15:
                for h in range(2): A(rd(ks+1, t, h, XB+4*t))
    stamp(A, f"g{L}_mm")
    if L == 0:
        A("v_lshrrev_b32 v13, 2, v2"); A("v_lshlrev_b32 v13, 4, v13"); A("v_lshl_add_u32 v13, v3, 2, v13"); A("v_and_b32 v14, 3, v2"); A("v_add_u32 v13, v13, v14")
        A("v_lshlrev_b32 v13, 4, v13")
    hv = "v13" if L == 0 else "v1"
    A(f"s_mul_i32 s30, s53, {2*NCH*1024}"); A(f"s_add_u32 s30, s30, {H1 if L == 0 else H2}"); A("s_lshl_b32 s6, s57, 10"); A("s_add_u32 s30, s30, s6")
    A(f"s_add_u32 s31, s30, {NCH*1024}")
    if L == 1: vm.wait(['q'])
    PK = XB
    for i in range(3):
        A(f"s_add_u32 s6, s57, {i}"); A(f"s_cmp_ge_u32 s6, {NCH}"); A(f"s_cbranch_scc1 G1_END{L}")
        for t in range(8):
            d = ACC+(i*8+t)*4
            A(f"v_max_f32 v{d}, 0, v{d}"); A(f"v_max_f32 v{d+2}, 0, v{d+2}")
            A(f"v_mul_f32 v{d}, v{d}, v{d+1}"); A(f"v_mul_f32 v{d+2}, v{d+2}, v{d+3}")
            A(f"v_cvt_pk_bf16_f32 v{PK+8*i+t}, v{d}, v{d+2}")
        for half in range(2):
            R = PK+8*i+4*half
            A(f"v_permlane32_swap_b32 v{R}, v{R+2}"); A(f"v_permlane32_swap_b32 v{R+1}, v{R+3}")
        for half in range(2):
            R = PK+8*i+4*half
            A(f"v_permlane16_swap_b32 v{R}, v{R+1}"); A(f"v_permlane16_swap_b32 v{R+2}, v{R+3}")
        for half in range(2):
            R = PK+8*i+4*half
            A(f"buffer_store_dwordx4 v[{R}:{R+3}], {hv}, s[8:11], s{30+half} offen offset:{i*1024} {SC}")
    A(f"s_branch G1_END{L}")
    A.label(f"G1_STATS{L}")
    for ks in range(16):
        for f in dma_list(vs, ks): f()
    A("s_lshl_b32 s6, s3, 9")
    for r in range(4): A(f"v_add_u32 v{8+r}, s6, v{8+r}")
    A("v_mov_b32 v13, -1"); A("v_mov_b32 v14, 0xffff"); A("v_cmp_gt_u32 vcc, 16, v0"); A("v_cndmask_b32 v13, v13, v14, vcc")
    A("s_waitcnt vmcnt(0)"); A("s_barrier"); vs.reset()
    SB = 16
    for half in range(2):
        for ks in range(8*half, 8*half+8):
            for t in range(2):
                for h in range(2): A(rd(ks, t, h, SB+((ks%8)*2+t)*4))
            if ks % 2 == 1: A("s_waitcnt lgkmcnt(4)")
        A("s_waitcnt lgkmcnt(0)")
        if half == 0:
            for t in range(2): A(f"v_and_b32 v{SB+4*t}, v{SB+4*t}, v13")
        for ks in range(8*half, 8*half+8):
            for t in range(2):
                x = vr(SB+((ks%8)*2+t)*4, 4); acc = vr(80+4*t, 4)
                A(f"{MF} {acc}, {x}, {x}, {'0' if ks == 0 else acc}")
    A("v_and_b32 v14, 3, v2")
    A(f"s_mov_b32 s7, {F32H(1/512)}"); A(f"v_mov_b32 v15, {F32H(EPS)}")
    for r in range(1, 4):
        A(f"v_cmp_eq_u32 vcc, {r}, v14")
        for t in range(2): A(f"v_cndmask_b32 v{80+4*t}, v{80+4*t}, v{80+4*t+r}, vcc")
    for t in range(2): A(f"v_fma_f32 v{80+4*t}, v{80+4*t}, s7, v15")
    for t in range(2): A(f"v_rcp_f32 v{81+4*t}, v{80+4*t}")
    A("v_lshlrev_b32 v13, 2, v2")
    A("s_lshl_b32 s6, s53, 9"); A(f"s_add_u32 s6, s6, {RR2 if L == 0 else RR4}"); A("s_lshl_b32 s7, s3, 7"); A("s_add_u32 s6, s6, s7")
    A("v_lshrrev_b32 v14, 2, v2"); A("v_cmp_eq_u32 vcc, v14, v3"); A("s_mov_b64 exec, vcc")
    for t in range(2): A(f"buffer_store_dword v{81+4*t}, v13, s[8:11], s6 offen offset:{64*t} {SC}")
    A("s_mov_b64 exec, -1")
    for f in w2_list(vs)[:44-nlate]: f()
    if L == 1:
        for f in q_list(vs): f()
        A("s_waitcnt vmcnt(0)")
    A.label(f"G1_END{L}")
    A("s_nop 7")
    stamp(A, f"g{L}_st")
    def acc(a, u): return vr(ACC+(u*4+a)*4, 4)
    def red_write(base):
        for u in range(1, 4):
            A(f"s_mul_i32 s7, s{92+u}, 48"); A(f"s_add_u32 s7, s7, {base}")
            A(f"v_add_u32 v5, s7, v1")
            for a in range(4): A(f"ds_write_b128 v5, {acc(a,u)} offset:{(u-1)*4096+a*1024}")
        A("s_mul_i32 s7, s3, 12288"); A(f"s_add_u32 s7, s7, {base}"); A("v_add_u32 v5, s7, v1")
        A("s_waitcnt lgkmcnt(0)"); A("s_barrier")
    def red_read(RD):
        for i in range(12): A(f"ds_read_b128 v[{RD+4*i}:{RD+4*i+3}], v5 offset:{i*1024}")
    def red_add(RD):
        for u in range(3):
            A(f"s_waitcnt lgkmcnt({8-4*u})")
            for i in range(16): A(f"v_add_f32 v{ACC+i}, v{ACC+i}, v{RD+16*u+i}")
    if L == 1:
        XQ = 80
        A("v_lshlrev_b32 v8, 11, v3"); A("v_lshl_add_u32 v8, v2, 3, v8"); A("v_and_b32 v9, 1, v3"); A("v_lshl_add_u32 v8, v9, 7, v8")
        A("s_lshl_b32 s4, s3, 15"); A("s_and_b32 s5, s55, 1"); A("s_lshl_b32 s5, s5, 10"); A("s_add_u32 s4, s4, s5")
        for u in range(4):
            A(f"s_add_u32 s5, s4, s{92+u}"); A(f"v_add_u32 v9, s5, v8"); A("v_xor_b32 v10, 128, v9")
            for ks in range(4):
                for h in range(2):
                    A(f"ds_read_b64_tr_b16 v[{XQ+16*u+4*ks+2*h}:{XQ+16*u+4*ks+2*h+1}], v{9+h} offset:{ks*8192}")
            if u >= 1:
                A("s_waitcnt lgkmcnt(8)")
                for ks in range(4):
                    for a in range(4):
                        A(f"{MF} {acc(a,u-1)}, a[{16*ks+4*a}:{16*ks+4*a+3}], {vr(XQ+16*(u-1)+4*ks,4)}, {'0' if ks == 0 else acc(a,u-1)}")
        A("s_waitcnt lgkmcnt(0)")
        for ks in range(4):
            for a in range(4):
                A(f"{MF} {acc(a,3)}, a[{16*ks+4*a}:{16*ks+4*a+3}], {vr(XQ+48+4*ks,4)}, {'0' if ks == 0 else acc(a,3)}")
    arrive(A, f"c{L}"); vm.reset()
    stamp(A, f"g{L}_arr")
    if L == 0:
        for f in allw2[44-nlate:]: f()
        A("v_lshrrev_b32 v8, 3, v2"); A("v_lshlrev_b32 v9, 2, v8"); A("v_and_b32 v10, 7, v2"); A("v_xor_b32 v9, v9, v10")
        A("v_lshlrev_b32 v8, 11, v8"); A("v_lshl_add_u32 v8, v9, 5, v8"); A("v_lshl_add_u32 v8, v3, 8, v8")
        A("s_and_b32 s26, s55, 1"); A("s_lshl_b32 s26, s26, 10"); A("s_lshl_b32 s7, s56, 14"); A("s_add_u32 s26, s26, s7"); A("s_lshl_b32 s7, s3, 12"); A("s_add_u32 s26, s26, s7")
        A("v_add_u32 v8, s26, v8")
        A("s_lshl_b32 s26, s53, 17"); A(f"s_add_u32 s26, s26, {XT2}")
        A("s_cmp_lt_u32 s56, 4"); A("s_cselect_b32 s27, 65536, 0")
        A("v_lshlrev_b32 v9, 6, v3")
        A("s_lshl_b32 s7, s56, 6"); A("s_lshl_b32 s6, s3, 4"); A("s_add_u32 s7, s7, s6"); A("v_add_u32 v10, s7, v2")
        A("v_cmp_ne_u32 vcc, 1, v10"); A("v_cndmask_b32 v10, 0, 1.0, vcc")
        A("v_lshlrev_b32 v11, 2, v0")
    else:
        red_write(0); red_read(80); red_add(80)
        for i in range(16): A(f"v_accvgpr_write_b32 a{176+i}, v{ACC+i}")
        A("v_lshlrev_b32 v8, 15, v2"); A("v_lshl_add_u32 v8, v3, 5, v8")
        A("s_lshl_b32 s26, s55, 10"); A("s_lshl_b32 s7, s3, 19"); A("s_add_u32 s26, s26, s7"); A("s_lshl_b32 s7, s56, 7"); A("s_add_u32 s26, s26, s7")
        A("v_lshlrev_b32 v9, 2, v2"); A("s_lshl_b32 s7, s3, 6"); A("v_add_u32 v9, s7, v9")
    A("s_lshl_b32 s28, s55, 8"); A(f"s_add_u32 s29, s28, {RR2 if L == 0 else RR4}")
    wait(A, f"c{L}")
    stamp(A, f"h{L}_go")
    if L == 0:
        hdst = [80, 96, 112, 128, 80, 144, 96, 160, 112, 176, 128]
        hreg = lambda k, i: vr(hdst[k]+4*i, 4)
        after = {0: [4, 5], 1: [6, 7], 2: [8, 9], 3: [10]}
        pre = 4
    else:
        hreg = lambda k, i: vr(16*k+4*i, 4, 'a')
        pre = OPT.get('hpre', 5)
        after = {k: [pre+2*k, pre+2*k+1] for k in range(4)}
    def hloads(k): return [(lambda i=i: frag(vm, hreg(k, i), 25, k, i, L == 1, ('h', k))) for i in range(4)] if k < 11 else []
    RRR = 192
    for k in range(pre):
        for f in hloads(k): f()
    pend = []
    for k in range(11):
        tags = [('h', k)] + ([('w2', k)] if ('w2', k) in vm.ops else [])
        vm.wait(tags)
        if k == 0: stamp(A, f"h{L}_0")
        n = 0
        for u in (1, 2, 3, 0):
            for a in range(4):
                opa, opb = (hreg(k, a), w2reg(k, u)) if L == 0 else (w2reg(k, a), hreg(k, u))
                A(f"{MF} {acc(a,u)}, {opa}, {opb}, {'0' if k == 0 else acc(a,u)}")
                if pend and n % 2 == 0: pend.pop(0)()
                n += 1
        for kk in after.get(k, []): pend += hloads(kk)
        if k == 3:
            if L == 0:
                pend += [(lambda i=i: vm.issue(f"buffer_load_dwordx4 v[{RRR+4*i}:{RRR+4*i+3}], v9, s[8:11], s29 offen offset:{16*i} {SC}", 'rr')) for i in range(4)]
            else:
                pend += [lambda: vm.issue(f"buffer_load_dword v10, v9, s[8:11], s29 offen {SC}", 'rr')]
    assert not pend
    stamp(A, f"h{L}_mm")
    RD, XF, EP = 80, 128, 144
    red_write("s27" if L == 0 else 49152)
    red_read(RD)
    if L == 0:
        A(f"ds_read_b128 v[{EP}:{EP+3}], v8"); A(f"ds_read_b128 v[{EP+4}:{EP+7}], v8 offset:16")
        for u in range(3):
            A(f"s_waitcnt lgkmcnt({10-4*u})")
            for i in range(16): A(f"v_add_f32 v{ACC+i}, v{ACC+i}, v{RD+16*u+i}")
        A("s_mov_b32 s7, 0xffff0000")
        A("s_waitcnt vmcnt(0) lgkmcnt(0)")
        for i in range(8):
            A(f"v_lshlrev_b32 v{XF+2*i}, 16, v{EP+i}"); A(f"v_and_b32 v{XF+2*i+1}, s7, v{EP+i}")
        for i in range(16): A(f"v_fma_f32 v{ACC+i}, v{ACC+i}, v{RRR+i}, v{XF+i}")
        for i in range(8): A(f"v_cvt_pk_bf16_f32 v{EP+i}, v{ACC+2*i}, v{ACC+2*i+1}")
        for i in range(2): A(f"buffer_store_dwordx4 v[{EP+4*i}:{EP+4*i+3}], v8, s[8:11], s26 offen offset:{16*i} {SC}")
        Q0 = ACC + 16
        for i in range(16): A(f"v_mul_f32 v{Q0+i}, v{ACC+i}, v10")
        for i in range(16): A(f"v_mul_f32 v{ACC+i}, v{ACC+i}, v{Q0+i}")
        for i in range(8): A(f"v_add_f32_dpp v{Q0+i}, v{ACC+i}, v{ACC+i} row_ror:8 row_mask:0xf bank_mask:0x3")
        for i in range(8): A(f"v_add_f32_dpp v{Q0+i}, v{ACC+8+i}, v{ACC+8+i} row_ror:8 row_mask:0xf bank_mask:0xc")
        for i in range(4): A(f"v_add_f32_dpp v{ACC+i}, v{Q0+i}, v{Q0+i} row_half_mirror row_mask:0xf bank_mask:0x5")
        for i in range(4): A(f"v_add_f32_dpp v{ACC+i}, v{Q0+4+i}, v{Q0+4+i} row_half_mirror row_mask:0xf bank_mask:0xa")
        A("s_mov_b32 s4, 0xcccccccc"); A("s_mov_b32 s5, 0xcccccccc"); A("s_mov_b32 s6, 0xaaaaaaaa"); A("s_mov_b32 s7, 0xaaaaaaaa")
        for i in range(2):
            A(f"v_cndmask_b32 v{Q0+i}, v{ACC+i}, v{ACC+2+i}, s[4:5]"); A(f"v_cndmask_b32 v{Q0+2+i}, v{ACC+2+i}, v{ACC+i}, s[4:5]")
        for i in range(2): A(f"v_add_f32_dpp v{ACC+i}, v{Q0+2+i}, v{Q0+i} quad_perm:[2,3,0,1] row_mask:0xf bank_mask:0xf")
        A(f"v_cndmask_b32 v{Q0}, v{ACC}, v{ACC+1}, s[6:7]"); A(f"v_cndmask_b32 v{Q0+1}, v{ACC+1}, v{ACC}, s[6:7]")
        A(f"v_add_f32_dpp v{ACC}, v{Q0+1}, v{Q0} quad_perm:[1,0,3,2] row_mask:0xf bank_mask:0xf")
        A(f"s_add_u32 s28, s28, {SSQ3}")
        A(f"buffer_atomic_add_f32 v{ACC}, v11, s[8:11], s28 offen {SC}")
        stamp(A, "h0_st")
        arrive(A, 2); vm.reset()
        stamp(A, "h0_arr")
    else:
        for i in range(16): A(f"v_accvgpr_read_b32 v{XF+i}, a{176+i}")
        red_add(RD)
        A("s_waitcnt vmcnt(0)")
        for i in range(16): A(f"v_fma_f32 v{ACC+i}, v{ACC+i}, v10, v{XF+i}")
        for i in range(8): A(f"v_cvt_pk_bf16_f32 v{EP+i}, v{ACC+2*i}, v{ACC+2*i+1}")
        for i in range(2): A(f"buffer_store_dwordx4 v[{EP+4*i}:{EP+4*i+3}], v8, s[20:23], s26 offen offset:{16*i}")
        if OPT['stamps']:
            A("s_waitcnt vmcnt(0)")
            stamp(A, "end")
            A("s_lshl_b32 s4, s2, 2"); A("s_add_u32 s4, s4, s3"); A("s_lshl_b32 s4, s4, 7"); A(f"s_add_u32 s4, s4, {STAMP}")
            A("s_mov_b64 exec, 1"); A("v_mov_b32 v4, 0")
            for i in range(32): A(f"v_mov_b32 v{16+i}, s{SREG[i]}")
            for i in range(8): A(f"buffer_store_dwordx4 v[{16+4*i}:{19+4*i}], v4, s[8:11], s4 offen offset:{16*i}")
        A("s_endpgm")

def build(path):
    A = Asm(); vm = VM(A)
    STAMPS.clear()
    A.raw('.amdgcn_target "amdgcn-amd-amdhsa--gfx950"'); A.raw(".text")
    gen_entry_p1(A)
    for layer in range(2):
        gen_col(A, vm, layer)
        gen_ffn(A, vm, layer)
    A.label("Lcode_end")
    A.raw('.section .rodata,"a"')
    A.raw(descriptor(KN, 512, 102, 256))
    arr = np.concatenate([p1_table()[:2048], col_table()])
    A.raw(".p2align 8"); A.raw(".type tbl,@object"); A.raw("tbl:")
    for i in range(0, len(arr), 16):
        A.raw(".long " + ",".join(f"0x{int(x):x}" for x in arr[i:i+16]))
    hdr = open("interleave_layers__spectral_gfnet__glu_gated_reglu__prompt.s.ref").read().split("\n")[:11]
    hdr.append("; @launch grid=(256,1,1) block=(256,1,1) lds=147456")
    open(path, "w").write("\n".join(hdr) + "\n" + A.text())
    import json; json.dump(STAMPS, open(path + ".stamps.json", "w"))
    return A

if __name__ == "__main__":
    for a in sys.argv[2:]:
        k, v = a.split("="); OPT[k] = int(v)
    A = build(sys.argv[1])
    print("nops", A.nops, "stamps", len(STAMPS))
```
